```python
import torch

def _softmax(x, axis=-1):
    return torch.softmax(x, dim=axis)
def _gelu(x):
    return torch.nn.functional.gelu(x, approximate="tanh")
def _silu(x):
    return torch.nn.functional.silu(x)
def _sigmoid(x):
    return torch.sigmoid(x)
def _layernorm(x, axis=-1, eps=1e-5):
    m = x.mean(dim=axis, keepdim=True)
    v = x.var(dim=axis, keepdim=True, unbiased=False)
    return (x - m) / torch.sqrt(v + eps)
def _scatter_add(tgt, idx, src, axis=0):
    return tgt.clone().index_add_(axis, idx, src)
def _segment_sum(src, seg, n):
    out = torch.zeros((n,) + src.shape[1:], dtype=src.dtype)
    return out.index_add_(0, seg, src)
def _pad(x, pw):
    flat = tuple(v for pair in reversed(pw) for v in pair)
    return torch.nn.functional.pad(x, flat)

kernel_name = 'standalone__gqa_softmax__near_ridge'

def setup_inputs():

    _w = (lambda a: (lambda t: t.to(torch.bfloat16) if t.is_floating_point() else t)(torch.as_tensor(a)))
    B, Hq, Hkv, Sq, Sk, D = 8, 16, 8, 256, 512, 256
    return {
        "q": _w((lambda *s: torch.randn(*s, dtype=torch.bfloat16) * 0.8)(B, Hq, Sq, D)),
        "k": _w((lambda *s: torch.randn(*s, dtype=torch.bfloat16) * 0.8)(B, Hkv, Sk, D)),
        "v": _w((lambda *s: torch.randn(*s, dtype=torch.bfloat16) * 0.05)(B, Hkv, Sk, D)),
    }

def reference(q, k, v):
    B, Hq, Sq, D = q.shape
    Hkv = k.shape[1]
    rep = Hq // Hkv
    k = (lambda x, n, axis: torch.repeat_interleave(x, n, dim=axis))(k, rep, axis=1)
    v = (lambda x, n, axis: torch.repeat_interleave(x, n, dim=axis))(v, rep, axis=1)
    scale = D ** -0.5
    scores = torch.einsum("bhqd,bhkd->bhqk", q, k) * scale
    p = _softmax(scores, axis=-1)
    return torch.einsum("bhqk,bhkd->bhqd", p, v)
```

```python
KN = "standalone__gqa_softmax__near_ridge_kernel"

HEADER = """; Kernarg layout for this problem (48 bytes, ptrs only, base s[0:1]):
; @launch grid=({gx},1,1) block=({bx},1,1) lds={lds}
.amdgcn_target "amdgcn-amd-amdhsa--gfx950"
.text
.globl {kn}
.p2align 8
.type {kn},@function
{kn}:
"""

FOOTER = """
.section .rodata,"a"
.p2align 6
.amdhsa_kernel {kn}
  .amdhsa_next_free_vgpr {vgpr}
  .amdhsa_next_free_sgpr {sgpr}
  .amdhsa_accum_offset {acc}
  .amdhsa_group_segment_fixed_size 0
  .amdhsa_kernarg_size 48
  .amdhsa_user_sgpr_count 2
  .amdhsa_user_sgpr_kernarg_segment_ptr 1
  .amdhsa_system_sgpr_workgroup_id_x 1
.end_amdhsa_kernel
"""

class Asm:
    def __init__(self):
        self.lines = []
    def __call__(self, s):
        for l in s.strip("\n").split("\n"):
            l = l.strip()
            if l:
                self.lines.append(("    " + l) if not l.endswith(":") else l)
    def label(self, name):
        self.lines.append(name + ":")
    def comment(self, s):
        self.lines.append("    ; " + s)
    def text(self, gx, bx, lds, vgpr, sgpr, acc):
        return HEADER.format(gx=gx, bx=bx, lds=lds, kn=KN) + "\n".join(self.lines) + "\n" + FOOTER.format(kn=KN, vgpr=vgpr, sgpr=sgpr, acc=acc)

def vr(a, n=1):
    return f"v{a}" if n == 1 else f"v[{a}:{a+n-1}]"
def sr(a, n=1):
    return f"s{a}" if n == 1 else f"s[{a}:{a+n-1}]"
def ar(a, n=1):
    return f"a{a}" if n == 1 else f"a[{a}:{a+n-1}]"
```

```python
import re

def regs_of(tok):
    tok = tok.strip()
    neg = tok.lstrip("-")
    m = re.fullmatch(r"abs\((.*)\)", neg)
    if m: neg = m.group(1)
    m = re.fullmatch(r"([vsa])(\d+)", neg)
    if m: return [f"{m.group(1)}{m.group(2)}"]
    m = re.fullmatch(r"([vsa])\[(\d+):(\d+)\]", neg)
    if m: return [f"{m.group(1)}{i}" for i in range(int(m.group(2)), int(m.group(3)) + 1)]
    if neg in ("vcc",): return ["vcc"]
    if neg in ("exec",): return ["exec"]
    if neg == "m0": return ["m0"]
    return []

TRANS = ("v_exp_f32", "v_log_f32", "v_rcp_f32", "v_rsq_f32", "v_sqrt_f32")

class I:
    def __init__(self, text):
        self.text = text
        t = text.split(";")[0].strip()
        parts = t.split(None, 1)
        self.op = parts[0]
        ops = []
        if len(parts) > 1:
            depth = 0; cur = ""
            for ch in parts[1]:
                if ch == "[": depth += 1
                if ch == "]": depth -= 1
                if ch == "," and depth == 0:
                    ops.append(cur.strip()); cur = ""
                else: cur += ch
            ops.append(cur.strip())
        self.mods = ""
        if ops:
            l = ops[-1].split(None, 1)
            ops[-1] = l[0]
            if len(l) > 1: self.mods = l[1]
        self.ops = ops
        op = self.op
        self.kind = "other"
        R, W = [], []
        self.srcA = self.srcB = self.srcC = []
        if op.startswith("v_mfma"):
            self.kind = "mfma"
            W = regs_of(ops[0]); self.srcA = regs_of(ops[1]); self.srcB = regs_of(ops[2]); self.srcC = regs_of(ops[3])
            R = self.srcA + self.srcB + self.srcC
            self.passes = 8 if "32x32" in op else 4
        elif op.startswith("v_permlane32_swap") or op.startswith("v_permlane16_swap"):
            self.kind = "valu"; W = regs_of(ops[0]) + regs_of(ops[1]); R = list(W)
        elif op.startswith("v_cmp"):
            self.kind = "valu"; W = regs_of(ops[0]); R = sum([regs_of(o) for o in ops[1:]], [])
        elif op.startswith("v_readfirstlane") or op.startswith("v_readlane"):
            self.kind = "valu"; W = regs_of(ops[0]); R = sum([regs_of(o) for o in ops[1:]], [])
        elif op.startswith("v_"):
            self.kind = "trans" if op.replace("_e32", "").replace("_e64", "") in TRANS else "valu"
            W = regs_of(ops[0]); R = sum([regs_of(o) for o in ops[1:]], [])
            if op.startswith("v_fmac") or op.startswith("v_dot2c") or op.startswith("v_pk_fmac"): R += W
            if op.startswith("v_cndmask") and len(ops) == 3: R += ["vcc"]
        elif op.startswith("ds_read"):
            self.kind = "ds_read"; W = regs_of(ops[0]); R = regs_of(ops[1])
        elif op.startswith("ds_write"):
            self.kind = "ds_write"; R = sum([regs_of(o) for o in ops], [])
        elif op.startswith("buffer_load") and " lds" in (" " + self.mods):
            self.kind = "dma"; R = sum([regs_of(o) for o in ops], []) + ["m0"]
        elif op.startswith("buffer_load") or op.startswith("global_load"):
            self.kind = "vload"; W = regs_of(ops[0]); R = sum([regs_of(o) for o in ops[1:]], [])
        elif op.startswith("buffer_store"):
            self.kind = "vstore"; R = sum([regs_of(o) for o in ops], []); self.data = regs_of(ops[0])
        elif op.startswith("global_store"):
            self.kind = "vstore"; R = sum([regs_of(o) for o in ops], []); self.data = regs_of(ops[1])
        elif op in ("s_waitcnt", "s_barrier", "s_nop", "s_endpgm", "s_setprio", "s_sleep") or op.startswith("s_cbranch") or op == "s_branch":
            self.kind = "ctl"
        elif op.startswith("s_load") or op.startswith("s_memtime") or op.startswith("s_memrealtime"):
            self.kind = "smem"; W = regs_of(ops[0]); R = sum([regs_of(o) for o in ops[1:]], [])
        elif op.startswith("s_cmp") or op.startswith("s_bitcmp"):
            self.kind = "salu"; R = sum([regs_of(o) for o in ops], [])
        elif op.startswith("s_"):
            self.kind = "salu"; W = regs_of(ops[0]); R = sum([regs_of(o) for o in ops[1:]], [])
        self.R = set(R); self.W = set(W)
    def states(self):
        if self.op == "s_nop": return int(self.ops[0], 0) + 1
        return 1

def needed_gap(p, c):
    g = 0
    pv = p.kind in ("valu", "trans")
    cv = c.kind in ("valu", "trans")
    if p.kind == "mfma":
        n = {8: 12, 4: 8}[p.passes]
        if c.kind == "mfma":
            if p.W & set(c.srcA + c.srcB): g = max(g, n)
            if p.W & set(c.srcC):
                if not (set(c.srcC) == p.W and c.passes == p.passes): g = max(g, {8: 10, 4: 6}[p.passes])
            if (p.W & c.W) and not (p.W & set(c.srcC)):
                g = max(g, {8: 10, 4: 6}[p.passes])
        elif cv or c.kind in ("ds_read", "ds_write", "vload", "vstore", "dma"):
            if p.W & (c.R | c.W): g = max(g, n)
        if cv and (set(p.srcC) & c.W): g = max(g, {8: 7, 4: 3}[p.passes])
    if pv:
        vw = set(x for x in p.W if x[0] in "va")
        sw = set(x for x in p.W if x[0] == "s" or x == "vcc")
        if c.kind == "mfma" and (vw & c.R): g = max(g, 2)
        if c.op.startswith("v_permlane") and (vw & c.R): g = max(g, 2)
        if (c.op.startswith("v_readfirstlane") or c.op.startswith("v_readlane")) and (vw & c.R): g = max(g, 1)
        if "dpp" in c.text.split(";")[0] or "row_" in c.mods or "quad_perm" in c.mods:
            if vw & c.R: g = max(g, 2)
        if p.kind == "trans" and c.kind != "trans" and (cv or c.kind == "mfma") and (vw & c.R): g = max(g, 1)
        if sw:
            if cv and (sw & c.R): g = max(g, 2)
            if c.kind in ("vload", "vstore", "dma") and (sw & c.R): g = max(g, 5)
            if c.kind == "salu" and (sw & c.R): g = max(g, 1)
    if p.kind == "salu" and "m0" in p.W and c.kind == "dma": g = max(g, 1)
    if p.kind == "vstore" and len(p.data) >= 3 and (set(p.data) & c.W): g = max(g, 2)
    return g

class Stream:
    def __init__(self):
        self.ins = []
        self.lgkm = []
        self.vm = []
    def raw(self, s):
        self.ins.append(s)
    def __call__(self, text, tag=None):
        for l in text.strip("\n").split("\n"):
            l = l.strip()
            if not l: continue
            if l.startswith(";") or l.endswith(":") or l.startswith("."):
                self.ins.append(l); continue
            i = I(l)
            self._pad(i)
            self.ins.append(i)
            if i.kind in ("ds_read", "ds_write"): self.lgkm.append(tag)
            if i.kind in ("dma", "vload", "vstore"): self.vm.append(tag)
            if i.op == "s_waitcnt":
                m = re.search(r"lgkmcnt\((\d+)\)", l)
                if m:
                    n = int(m.group(1)); self.lgkm = self.lgkm[len(self.lgkm) - n:] if n < len(self.lgkm) else self.lgkm
                    if n == 0: self.lgkm = []
                m = re.search(r"vmcnt\((\d+)\)", l)
                if m:
                    n = int(m.group(1)); self.vm = self.vm[len(self.vm) - n:] if n < len(self.vm) else self.vm
                    if n == 0: self.vm = []
    def _pad(self, c):
        dist = 0; need = 0
        for p in reversed(self.ins):
            if isinstance(p, str): continue
            g = needed_gap(p, c)
            if g > dist: need = max(need, g - dist)
            dist += p.states()
            if dist >= 20: break
        if need > 0:
            self.ins.append(I(f"s_nop {need-1}"))
    def wait_lgkm(self, tag):
        idx = [i for i, t in enumerate(self.lgkm) if t == tag]
        if not idx: return
        n = len(self.lgkm) - 1 - max(idx)
        assert n <= 15, n
        self(f"s_waitcnt lgkmcnt({n})")
    def wait_vm(self, tag):
        idx = [i for i, t in enumerate(self.vm) if t == tag]
        if not idx: return
        n = len(self.vm) - 1 - max(idx)
        assert n <= 63
        self(f"s_waitcnt vmcnt({n})")
    def maxoutstanding_guard(self):
        assert len(self.lgkm) <= 15, len(self.lgkm)
    def lines(self):
        out = []
        for i in self.ins:
            if isinstance(i, str):
                out.append(i if (i.endswith(":") or i.startswith(".")) else "    " + i)
            else: out.append("    " + i.text)
        return out
```

```python
import sys, struct
from asmlib import HEADER, FOOTER, KN
from emit import Stream

def f2u(x): return struct.unpack("<I", struct.pack("<f", x))[0]

def gen(LA1=6, LA2=3, stamps=False):
    e = Stream()
    SLOT = 32768; NS = 4; QOFF = NS * SLOT
    vLane = 1
    vDK, vDV = 2, 3
    vKA = 4
    vQA = 12
    vVA = 16
    vOA = 20
    vXW, vXR = 21, 22
    vM, vL, vG = 23, 24, 25
    vT = 26
    vQF = 32
    vKF = 64
    NKF = 8
    vS = 128
    vP = 128
    vO = 192
    vE = 96
    e(f"""
    s_cmp_ge_u32 s2, 256
    s_cbranch_scc1 L_end
    s_load_dwordx4 s[4:7], s[0:1], 0
    s_load_dwordx4 s[8:11], s[0:1], 16
    """)
    if stamps:
        e("s_load_dwordx2 s[36:37], s[0:1], 40")
        e("s_memrealtime s[40:41]")
    e(f"""
    v_lshrrev_b32 v{vT}, 6, v0
    v_and_b32 v{vLane}, 63, v0
    v_readfirstlane_b32 s3, v{vT}
    s_and_b32 s12, s2, 7
    s_lshr_b32 s13, s2, 3
    s_lshr_b32 s14, s13, 2
    s_lshl_b32 s12, s12, 3
    s_add_u32 s12, s12, s14
    s_and_b32 s13, s13, 3
    s_lshl_b32 s14, s12, 18
    s_lshl_b32 s15, s13, 16
    s_add_u32 s15, s15, s14
    v_lshrrev_b32 v{vT}, 3, v{vLane}
    v_lshlrev_b32 v{vT}, 9, v{vT}
    s_lshl_b32 s32, s3, 12
    v_add_u32 v{vT}, s32, v{vT}
    v_and_b32 v{vT+1}, 7, v{vLane}
    v_lshrrev_b32 v{vT+2}, 4, v{vLane}   ; lane>>4
    v_xor_b32 v{vT+3}, v{vT+1}, v{vT+2}
    s_and_b32 s33, s3, 1
    s_lshl_b32 s33, s33, 2
    v_xor_b32 v{vT+3}, s33, v{vT+3}
    v_lshl_add_u32 v{vDK}, v{vT+3}, 4, v{vT}
    v_and_b32 v{vT+2}, 1, v{vT+2}
    v_lshlrev_b32 v{vT+2}, 2, v{vT+2}
    v_xor_b32 v{vT+3}, v{vT+1}, v{vT+2}
    v_lshl_add_u32 v{vDV}, v{vT+3}, 4, v{vT}
    s_lshl_b32 s32, s3, 10
    s_waitcnt lgkmcnt(0)
    s_add_u32 s16, s4, s15
    s_addc_u32 s17, s5, 0
    s_mov_b32 s18, 65536
    s_mov_b32 s19, 0x20000
    s_add_u32 s20, s6, s14
    s_addc_u32 s21, s7, 0
    s_mov_b32 s22, 262144
    s_mov_b32 s23, 0x20000
    s_add_u32 s24, s8, s14
    s_addc_u32 s25, s9, 0
    s_mov_b32 s26, 262144
    s_mov_b32 s27, 0x20000
    s_add_u32 s28, s10, s15
    s_addc_u32 s29, s11, 0
    s_mov_b32 s30, 65536
    s_mov_b32 s31, 0x20000
    """)
    stages = [("K", c, kh) for c in range(4) for kh in range(2)] + [("V", c, kh) for c in range(4) for kh in range(2)]
    def issue_dma(si):
        kind, c, kh = stages[si]
        slot = si % NS
        if kind == "K" and kh == 0:
            for i in range(2):
                e(f"s_add_u32 m0, s32, {QOFF + (c & 1) * 16384 + i * 8192}")
                e(f"s_mov_b32 s33, {i * 32768 + c * 128}")
                e(f"buffer_load_dwordx4 v{vDK}, s[16:19], s33 offen lds", tag=("dma", si))
        srd = "s[20:23]" if kind == "K" else "s[24:27]"
        vo = vDK if kind == "K" else vDV
        for i in range(4):
            e(f"s_add_u32 m0, s32, {slot * SLOT + i * 8192}")
            e(f"s_mov_b32 s33, {kh * 131072 + i * 32768 + c * 128}")
            e(f"buffer_load_dwordx4 v{vo}, {srd}, s33 offen lds", tag=("dma", si))
    for si in range(NS - 1): issue_dma(si)
    e(f"""
    s_lshr_b32 s34, s3, 2                ; h
    s_and_b32 s35, s3, 3                 ; r
    v_and_b32 v{vT}, 31, v{vLane}
    v_lshrrev_b32 v{vT+1}, 5, v{vLane}   ; hh
    v_lshrrev_b32 v{vT+2}, 1, v{vT}
    v_and_b32 v{vT+2}, 7, v{vT+2}        ; swz
    v_lshlrev_b32 v{vT+3}, 7, v{vT}      ; row*128
    s_lshl_b32 s38, s34, 14              ; h*16384
    s_lshl_b32 s39, s35, 12              ; r*4096
    s_add_u32 s39, s39, {QOFF}
    """)
    for st in range(4):
        e(f"""
        v_or_b32 v{vT+4}, {2*st}, v{vT+1}
        v_xor_b32 v{vT+4}, v{vT+4}, v{vT+2}
        v_lshl_add_u32 v{vT+4}, v{vT+4}, 4, v{vT+3}
        v_add_u32 v{vKA+st}, s38, v{vT+4}
        v_add_u32 v{vKA+4+st}, 0x10000, v{vKA+st}
        v_add_u32 v{vQA+st}, s39, v{vT+4}
        """)
    e(f"""
    v_and_b32 v{vT+2}, 15, v{vLane}      ; i
    v_lshrrev_b32 v{vT+3}, 2, v{vT+2}    ; rr
    v_lshl_add_u32 v{vT+4}, v{vT+1}, 2, v{vT+3}   ; 4hh+rr
    v_lshlrev_b32 v{vT+4}, 7, v{vT+4}
    v_add_u32 v{vT+4}, s38, v{vT+4}      ; + h*16384
    v_and_b32 v{vT+5}, 3, v{vT+2}        ; cc
    v_lshl_add_u32 v{vT+4}, v{vT+5}, 3, v{vT+4}
    v_lshrrev_b32 v{vT+5}, 4, v{vLane}
    v_and_b32 v{vT+5}, 1, v{vT+5}        ; g&1
    v_lshl_add_u32 v{vT+4}, v{vT+5}, 5, v{vT+4}   ; + (g&1)*32
    v_lshrrev_b32 v{vT+3}, 1, v{vT+3}    ; rr>>1
    v_lshl_add_u32 v{vVA+1}, v{vT+3}, 6, v{vT+4}
    s_lshl_b32 s39, s34, 6
    v_xor_b32 v{vVA+1}, s39, v{vVA+1}
    v_xor_b32 v{vVA}, 64, v{vVA+1}
    v_add_u32 v{vVA+2}, 0x10000, v{vVA}
    v_add_u32 v{vVA+3}, 0x10000, v{vVA+1}
    v_lshlrev_b32 v{vOA}, 9, v{vT}
    v_lshl_add_u32 v{vOA}, v{vT+1}, 4, v{vOA}
    s_lshl_b32 s38, s35, 14
    s_lshl_b32 s39, s34, 6
    s_add_u32 s38, s38, s39
    v_add_u32 v{vOA}, s38, v{vOA}
    s_lshl_b32 s38, s3, 12
    s_add_u32 s38, s38, {QOFF}
    v_lshlrev_b32 v{vT+2}, 4, v{vLane}
    v_add_u32 v{vXW}, s38, v{vT+2}
    v_xor_b32 v{vXR}, 0x4000, v{vXW}
    s_mov_b32 s42, {f2u(0.0625 * 1.4426950408889634):#x}
    """)
    def stage_begin(si):
        e("s_waitcnt lgkmcnt(0)")
        e.wait_vm(("dma", si))
        e("s_barrier")
        if si + NS - 1 < len(stages) and si >= 1:
            issue_dma(si + NS - 1)
    issue_dma(NS - 1)
    def stage_begin(si):
        if si > 0: e("s_waitcnt lgkmcnt(0)")
        e.wait_vm(("dma", si))
        e("s_barrier")
        if si >= 1 and si + NS - 1 < len(stages):
            issue_dma(si + NS - 1)
    ops = []
    fr = 0
    for si in range(8):
        _, c, kh = stages[si]
        slot = si % NS
        for st in range(4):
            for t in range(4):
                reads = []
                if kh == 0 and t == 0:
                    qf = vQF + (c & 1) * 16 + st * 4
                    reads.append(f"ds_read_b128 v[{qf}:{qf+3}], v{vQA+st} offset:{(c & 1) * 16384}")
                kf = vKF + (fr % NKF) * 4; fr += 1
                base = vKA + st + (4 if slot >= 2 else 0)
                reads.append(f"ds_read_b128 v[{kf}:{kf+3}], v{base} offset:{(slot & 1) * SLOT + t * 4096}")
                qf = vQF + (c & 1) * 16 + st * 4
                sacc = vS + (kh * 4 + t) * 16
                cin = "0" if (c == 0 and st == 0) else f"v[{sacc}:{sacc+15}]"
                ops.append(dict(stage=si, reads=reads, mfma=f"v_mfma_f32_32x32x16_bf16 v[{sacc}:{sacc+15}], v[{kf}:{kf+3}], v[{qf}:{qf+3}], {cin}"))
    n1 = len(ops)
    for si in range(8, 16):
        _, c, kh = stages[si]
        slot = si % NS
        for t in range(4):
            for ks in range(2):
                for dt in range(2):
                    kf = vKF + (fr % NKF) * 4; fr += 1
                    base = vVA + dt + (2 if slot >= 2 else 0)
                    off = (slot & 1) * SLOT + (t * 32 + ks * 16) * 128
                    reads = [f"ds_read_b64_tr_b16 v[{kf}:{kf+1}], v{base} offset:{off}",
                             f"ds_read_b64_tr_b16 v[{kf+2}:{kf+3}], v{base} offset:{off + 1024}"]
                    pf = vP + (kh * 4 + t) * 8 + ks * 4
                    oacc = vO + (c & 1) * 32 + dt * 16
                    cin = "0" if (kh == 0 and t == 0 and ks == 0) else f"v[{oacc}:{oacc+15}]"
                    ops.append(dict(stage=si, reads=reads, mfma=f"v_mfma_f32_32x32x16_bf16 v[{oacc}:{oacc+15}], v[{kf}:{kf+3}], v[{pf}:{pf+3}], {cin}"))
    def softmax():
        e("; ---- softmax")
        m0, m1 = vT, vT + 1
        e(f"v_max3_f32 v{m0}, v{vS}, v{vS+1}, v{vS+2}")
        e(f"v_max3_f32 v{m1}, v{vS+3}, v{vS+4}, v{vS+5}")
        k = 6
        while k + 3 < 128:
            e(f"v_max3_f32 v{m0}, v{m0}, v{vS+k}, v{vS+k+1}")
            e(f"v_max3_f32 v{m1}, v{m1}, v{vS+k+2}, v{vS+k+3}")
            k += 4
        e(f"v_max3_f32 v{m0}, v{m0}, v{vS+126}, v{vS+127}")
        e(f"v_max_f32 v{m0}, v{m0}, v{m1}")
        e(f"v_mov_b32 v{m1}, v{m0}")
        e(f"v_permlane32_swap_b32 v{m0}, v{m1}")
        e(f"v_max_f32 v{m0}, v{m0}, v{m1}")
        e(f"v_mul_f32 v{vM}, s42, v{m0}")
        l0, l1 = vT + 2, vT + 3
        for i in range(0, 128, 2):
            e(f"v_fma_f32 v{vS+i}, v{vS+i}, s42, -v{vM}")
            e(f"v_fma_f32 v{vS+i+1}, v{vS+i+1}, s42, -v{vM}")
            e(f"v_exp_f32 v{vS+i}, v{vS+i}")
            e(f"v_exp_f32 v{vS+i+1}, v{vS+i+1}")
            if i >= 2:
                j = i - 2
                if j == 0:
                    e(f"v_mov_b32 v{l0}, v{vS+j}"); e(f"v_mov_b32 v{l1}, v{vS+j+1}")
                else:
                    e(f"v_add_f32 v{l0}, v{l0}, v{vS+j}"); e(f"v_add_f32 v{l1}, v{l1}, v{vS+j+1}")
                e(f"v_cvt_pk_bf16_f32 v{vP + j // 2}, v{vS+j}, v{vS+j+1}")
        j = 126
        e(f"v_add_f32 v{l0}, v{l0}, v{vS+j}"); e(f"v_add_f32 v{l1}, v{l1}, v{vS+j+1}")
        e(f"v_cvt_pk_bf16_f32 v{vP + j // 2}, v{vS+j}, v{vS+j+1}")
        e(f"v_add_f32 v{l0}, v{l0}, v{l1}")
        e(f"v_mov_b32 v{l1}, v{l0}")
        e(f"v_permlane32_swap_b32 v{l0}, v{l1}")
        e(f"v_add_f32 v{vL}, v{l0}, v{l1}")
        e(f"v_mov_b32 v{vT+4}, v{vM}")
        e(f"v_mov_b32 v{vT+5}, v{vL}")
        e(f"ds_write_b64 v{vXW}, v[{vT+4}:{vT+5}]", tag="mlw")
    def ml_read():
        e(f"ds_read_b64 v[{vT+4}:{vT+5}], v{vXR}", tag="mlr")
    def ml_finish():
        e.wait_lgkm("mlr")
        e(f"""
        v_max_f32 v{vT}, v{vM}, v{vT+4}
        v_sub_f32 v{vT+1}, v{vM}, v{vT}
        v_sub_f32 v{vT+2}, v{vT+4}, v{vT}
        v_exp_f32 v{vT+1}, v{vT+1}
        v_exp_f32 v{vT+2}, v{vT+2}
        v_mul_f32 v{vT+3}, v{vT+1}, v{vL}
        v_fma_f32 v{vT+3}, v{vT+2}, v{vT+5}, v{vT+3}
        v_rcp_f32 v{vT+3}, v{vT+3}
        v_mul_f32 v{vG}, v{vT+1}, v{vT+3}
        """)
    lblc = [0]
    def xchg_send(c):
        ob = vO + (c & 1) * 32
        for i in range(16): e(f"v_mul_f32 v{vE+i}, v{vG}, v{ob+i}")
        for i in range(16): e(f"v_mul_f32 v{vE+16+i}, v{vG}, v{ob+16+i}")
        for i in range(4):
            e(f"ds_write_b128 v{vXW}, v[{vE+4*i}:{vE+4*i+3}] offset:{i*1024}", tag="xw")
    def xchg_read():
        for i in range(4):
            e(f"ds_read_b128 v[{vE+4*i}:{vE+4*i+3}], v{vXR} offset:{i*1024}", tag="xr")
    def xchg_finish(c):
        e.wait_lgkm("xr")
        for i in range(16): e(f"v_add_f32 v{vE+i}, v{vE+i}, v{vE+16+i}")
        for i in range(8): e(f"v_cvt_pk_bf16_f32 v{vE+16+i}, v{vE+2*i}, v{vE+2*i+1}")
        w = vE + 16
        e(f"v_permlane32_swap_b32 v{w}, v{w+2}")
        e(f"v_permlane32_swap_b32 v{w+1}, v{w+3}")
        e(f"v_permlane32_swap_b32 v{w+4}, v{w+6}")
        e(f"v_permlane32_swap_b32 v{w+5}, v{w+7}")
        e(f"buffer_store_dwordx4 v[{w}:{w+3}], v{vOA}, s[28:31], 0 offen offset:{c*128}", tag="st")
        e(f"buffer_store_dwordx4 v[{w+4}:{w+7}], v{vOA}, s[28:31], 0 offen offset:{c*128+32}", tag="st")
    nread = 0
    cur_stage = -1
    post_barrier = {}
    post_barrier[9] = [ml_read]
    for c in range(3):
        post_barrier[8 + 2 * (c + 1) + 1] = [xchg_read]
    def issue_reads_upto(k):
        nonlocal nread, cur_stage
        while nread <= k and nread < len(ops):
            o = ops[nread]
            if o["stage"] != cur_stage:
                cur_stage = o["stage"]
                stage_begin(cur_stage)
                for cb in post_barrier.get(cur_stage, []): cb()
            for r in o["reads"]: e(r, tag=("op", nread))
            nread += 1
    extra_after = {}
    def opidx(si, k): return (n1 + (si - 8) * 16 + k) if si >= 8 else si * 16 + k
    extra_after.setdefault(opidx(9, 2), []).append(ml_finish)
    for c in range(3):
        extra_after.setdefault(opidx(8 + 2 * (c + 1), 2), []).append(lambda c=c: xchg_send(c))
        extra_after.setdefault(opidx(8 + 2 * (c + 1) + 1, 2), []).append(lambda c=c: xchg_finish(c))
    for k, o in enumerate(ops):
        LA = LA1 if k < n1 else LA2
        if k < n1 and k + LA >= n1: issue_reads_upto(min(k + LA, n1 - 1 + LA2))
        else: issue_reads_upto(k + LA)
        if k == n1: softmax()
        e.wait_lgkm(("op", k))
        e(o["mfma"])
        for cb in extra_after.get(k, []): cb()
    xchg_send(3)
    e("s_waitcnt lgkmcnt(0)")
    e("s_barrier")
    xchg_read()
    xchg_finish(3)
    if stamps:
        e(f"""
        s_waitcnt vmcnt(0)
        s_memrealtime s[44:45]
        s_waitcnt lgkmcnt(0)
        v_mov_b32 v12, s40
        v_mov_b32 v13, s41
        v_mov_b32 v14, s44
        v_mov_b32 v15, s45
        s_lshl_b32 s46, s2, 7
        s_lshl_b32 s47, s3, 4
        s_add_u32 s46, s46, s47
        v_mov_b32 v16, s46
        v_cmp_eq_u32 vcc, 0, v{vLane}
        s_and_saveexec_b64 s[48:49], vcc
        global_store_dwordx4 v16, v[12:15], s[36:37]
        """)
    e("L_end:")
    e("s_endpgm")
    return HEADER.format(gx=256, bx=512, lds=163840, kn=KN) + "\n".join(e.lines()) + "\n" + FOOTER.format(kn=KN, vgpr=256, sgpr=64, acc=256)

if __name__ == "__main__":
    open("k1.s", "w").write(gen())
    open("k1_st.s", "w").write(gen(stamps=True))
```

```python
import sys, struct
from asmlib import HEADER, FOOTER, KN
from emit import Stream

def f2u(x): return struct.unpack("<I", struct.pack("<f", x))[0]

def gen(**kw):
    _gen(wr=None, **kw)
    return _gen(wr=dict(_gen.info['wr']), **kw)

def _gen(wr=None, LA1=5, LA2=3, prof=None, rt=False, lf="nt", sf="sc1", dist=(2, 3, 7, 7), loader="BBAB", prio=True,
         lateA=7, lateB=7, T=16.0, cpf=True, dmagap=2, W=4, LAm=2, s2=(128, 144, 160, 192, 224), s4=(416, 448, 480), endB=388,
         finper=2, rot=True, stgap=8, touch=None, recpf=(), vpf={298: 2, 330: 3}, pff=''):
    NS = 8; BLK = 16384; XOFF = NS * BLK; NX = 4
    RP = {}; kbs = []
    for k in range(256): RP[k] = min(k + LA1, 127 if k < 128 else 255)
    for p in list(range(0, 128, 16)) + list(s2): kbs.append(p - LA1)
    kbs.append(256 - LA1)
    if W:
        Ps = list(range(272, 385, 16))
        kb3 = [P - (W + LAm) for P in Ps]
        prevk, prevP = 256, 256 + LA2
        for P, kb in zip(Ps, kb3):
            for k in range(prevk, kb):
                RP[k] = prevP + -(-(k - prevk) * (P - 1 - prevP) // max(kb - 1 - prevk, 1))
            for k in range(kb, kb + W): RP[k] = P - 1
            prevk, prevP = kb + W, P
        for k in range(prevk, 512): RP[k] = min(max(k + LA2 if k > prevk else prevP, prevP), 511)
        kbs += kb3
    else:
        for k in range(256, 512): RP[k] = min(k + LA2, 511)
        kbs += [P - LA2 for P in range(272, 385, 16)]
    RP[512] = 511; RP[513] = 511
    kbs += [endB] + [p - LA2 for p in s4]
    kbs = sorted(set(kbs)); NB = len(kbs)
    vLane, vDK, vDV = 1, 2, 3
    vKA, vKA2, vQA, vQA2 = 4, 6, 8, 10
    vVA, vVA2 = 12, 16
    vOA, vX = 24, 25
    vM, vL, vF0, vInv = 26, 27, 28, 29
    vT = 30
    vMA, vMB = 34, 35
    FR = [20] + [36 + 4 * i for i in range(7)]
    NF = len(FR)
    for k in range(512): assert k <= RP[k] and RP[k + 1] < k + NF, (k, RP[k])
    vQF = 64; vS = 128; vP = 64; vO = 128
    PBREG = {t: vP + 8 * t for t in range(8)}
    PBREG[4] = 4
    pidx = [0]
    def mkstamp(e):
        def stamp(i):
            if prof is None: return
            r = 50 + 2 * i
            assert r + 1 <= 101
            pidx[0] = max(pidx[0], i + 1)
            e.raw(f"s_memtime s[{r}:{r+1}]" if not rt else f"s_memrealtime s[{r}:{r+1}]")
        return stamp
    blocks = []
    for c in range(4): blocks += [("Q", c, 0), ("K", c, 0), ("K", c, 1)]
    for c in range(4): blocks += [("K", c, 2), ("K", c, 3)]
    for j in range(2): blocks += [("V", c, j) for c in range(4)]
    for c in range(4): blocks += [("V", c, 2), ("V", c, 3)]
    bidx = {b: i for i, b in enumerate(blocks)}
    def lds_addr(lo, hi, b, off):
        o = (b % NS) * BLK + off
        return (lo, o) if o < 65536 else (hi, o - 65536)
    ops = []
    for half in range(2):
        for c in range(4):
            for j in (2 * half, 2 * half + 1):
                kb = bidx[("K", c, j)]; qb = bidx[("Q", c, 0)]
                qbase = vQF + ((c & 1) if half == 0 else c) * 16
                for st in range(2):
                    for kt in range(8):
                        reads = []
                        qf = qbase + st * 8
                        if half == 0 and j == 0 and kt == 0:
                            for qh in range(2):
                                r, o = lds_addr(vQA + st, vQA2 + st, qb, qh * 2048)
                                reads.append((qf + 4 * qh, (r, o), "b128", qb))
                        r, o = lds_addr(vKA + st, vKA2 + st, kb, kt * 2048)
                        reads.append((None, (r, o), "b128", kb))
                        g16 = (j & 1) * 8 + kt
                        ops.append(dict(reads=reads, acc=vS + (g16 >> 1) * 16 + (g16 & 1) * 4, b=qf, first=(c == 0 and st == 0)))
    def pv(c, j, n, u, Tt):
        vb = bidx[("V", c, j)]
        r, o = lds_addr(vVA + 2 * u + Tt, vVA2 + 2 * u + Tt, vb, n * 4096)
        tile = (j & 1) * 4 + n
        ops.append(dict(reads=[(None, (r, o), "tr", vb)], acc=vO + c * 32 + u * 16 + Tt * 4, b=(PBREG[tile] if j >= 2 else vP + tile * 8),
                        first=(j == 0 and n == 0), need=(("pb", tile) if j >= 2 else None)))
    for j in range(2):
        for c in range(4):
            for n in range(4):
                for u in range(2):
                    for Tt in range(2): pv(c, j, n, u, Tt)
    for c in range(4):
        for u in range(2):
            for j in (2, 3):
                for n in range(4):
                    for Tt in range(2): pv(c, j, n, u, Tt)
    assert len(ops) == 512
    first_rd = {}; last_rd = {}
    for k, o in enumerate(ops):
        for rd in o["reads"]:
            first_rd.setdefault(rd[3], k); last_rd[rd[3]] = k
    def rd_gap(m):
        base = 0 if m < 128 else (128 if m < 256 else 256)
        for k in range(base, 512):
            if RP[k] >= m: return k if k > base else base - LA1
    pub_at = {b: max(j for j in range(NB) if kbs[j] <= rd_gap(first_rd[b])) for b in range(len(blocks))}
    pub = {j: [b for b in pub_at if pub_at[b] == j] for j in range(NB)}
    def freed_at(b):
        for j in range(NB):
            if kbs[j] - 1 >= last_rd[b] and (blocks[b][0] != "Q" or j > pub_at[b]): return j
        return NB
    slot_of_bar = lambda j: min((kbs[j] + LA1) // 128, 3) if kbs[j] < 256 else (2 if kbs[j] < 384 else 3)
    issue = {j: [] for j in range(NB + 1)}
    nxt = 0
    for j in range(NB):
        hi = max([b for b in pub_at if pub_at[b] <= j])
        want = hi + dist[slot_of_bar(j)]
        while nxt <= want and nxt < len(blocks):
            prev = nxt - NS
            if prev >= 0 and freed_at(prev) > j - 1: break
            issue[j].append(nxt); nxt += 1
        assert nxt > hi, (j, nxt)
    assert nxt == len(blocks)
    def who(j): return loader[slot_of_bar(max(j - 1, 0))]
    owner = {b: who(j) for j in range(NB) for b in issue[j]}
    def split_dma(e, b):
        kind, c, j = blocks[b]
        srd = {"Q": "s[16:19]", "K": "s[20:23]", "V": "s[24:27]"}[kind]
        vo = vDV if kind == "V" else vDK
        out = []
        for i in range(4):
            def f(i=i):
                e(f"s_add_u32 m0, s32, {(b % NS) * BLK + i * 4096}")
                e(f"s_add_u32 s33, s{4 + c}, {j * 65536 + i * 16384}")
                e(f"buffer_load_dwordx4 v{vo}, {srd}, s33 offen {lf} lds", tag=("dma", b))
            out.append(f)
        return out
    def dma(e, b):
        for f in split_dma(e, b): f()
    nbar = {"A": 0, "B": 0}
    def barrier(e, g, j, stamp):
        assert nbar[g] == j, (g, nbar[g], j)
        for b in pub[j]:
            if owner[b] == g: e.wait_vm(("dma", b))
        if prof == "pre" and j >= 8: stamp(j - 6)
        e("s_barrier")
        nbar[g] += 1
        if g == "B" and kbs[j] in vpf:
            e(f"buffer_load_dword v15, v14, s[24:27], s{4 + vpf[kbs[j]]} offen {pff}", tag="vpf")
        if cpf and g == "B" and kbs[j] in recpf:
            e("global_load_dword v13, v12, s[46:47]", tag="cpf")
        if prof == "bar" and j >= 8: stamp(j - 6)
        if prof in ("bar", "pre") and j == 0: stamp(1)

    eB = Stream(); stampB = mkstamp(eB)
    e0 = eB
    stampB(0)
    if prof is not None: e0.raw("s_memrealtime s[40:41]")
    e0(f"""
    s_load_dwordx4 s[4:7], s[0:1], 0
    s_load_dwordx4 s[8:11], s[0:1], 16
    s_cmp_ge_u32 s2, 256
    s_cbranch_scc1 L_end
    """)
    if prof is not None: e0("s_load_dwordx2 s[36:37], s[0:1], 40")
    e0(f"""
    s_lshr_b32 s13, s2, 3
    v_lshrrev_b32 v{vT}, 6, v0
    v_and_b32 v{vLane}, 63, v0
    """)
    if cpf:
        e0("s_getpc_b64 s[46:47]")
        e0.raw("L_pc:")
        e0(f"""
        s_sub_u32 s46, s46, L_pc-{KN}
        s_subb_u32 s47, s47, 0
        s_lshl_b32 s38, s13, 10
        v_lshl_add_u32 v12, v{vLane}, 4, s38
        v_min_u32 v12, L_codeend-{KN}-4, v12
        v_cmp_gt_u32 vcc, 64, v0
        s_and_saveexec_b64 s[48:49], vcc
        s_cbranch_execz L_nocpf
        global_load_dword v23, v12, s[46:47]
        """)
        e0.raw("L_nocpf:")
        e0("s_mov_b64 exec, s[48:49]")
        e0.vm = []
    e0(f"""
    v_readfirstlane_b32 s3, v{vT}
    s_and_b32 s12, s2, 7
    s_lshr_b32 s14, s13, 2
    s_lshl_b32 s12, s12, 3
    s_add_u32 s12, s12, s14
    s_and_b32 s34, s13, 3
    s_lshl_b32 s14, s12, 18
    s_lshl_b32 s15, s34, 16
    s_add_u32 s15, s15, s14
    s_and_b32 s35, s3, 3
    v_lshrrev_b32 v{vT}, 3, v{vLane}
    v_lshlrev_b32 v{vT}, 9, v{vT}
    s_lshl_b32 s32, s35, 12
    v_add_u32 v{vT}, s32, v{vT}
    v_and_b32 v{vT+1}, 7, v{vLane}
    v_lshrrev_b32 v{vT+2}, 4, v{vLane}
    v_xor_b32 v{vT+3}, v{vT+1}, v{vT+2}
    s_and_b32 s33, s3, 1
    s_lshl_b32 s33, s33, 2
    v_xor_b32 v{vT+3}, s33, v{vT+3}
    v_lshl_add_u32 v{vDK}, v{vT+3}, 4, v{vT}
    s_lshl_b32 s32, s35, 10
    s_mov_b32 s18, 65536
    s_mov_b32 s19, 0x20000
    s_mov_b32 s22, 262144
    s_mov_b32 s23, 0x20000
    s_mov_b32 s26, 262144
    s_mov_b32 s27, 0x20000
    s_mov_b32 s30, 65536
    s_mov_b32 s31, 0x20000
    s_lshl_b32 s38, s12, 7
    {"" if rot else "s_mov_b32 s38, 0"}
    s_waitcnt lgkmcnt(0)
    s_add_u32 s16, s4, s15
    s_addc_u32 s17, s5, 0
    s_add_u32 s20, s6, s14
    s_addc_u32 s21, s7, 0
    s_add_u32 s24, s8, s14
    s_addc_u32 s25, s9, 0
    s_add_u32 s28, s10, s15
    s_addc_u32 s29, s11, 0
    s_and_b32 s4, s38, 0x180
    s_add_u32 s5, s38, 128
    s_and_b32 s5, s5, 0x180
    s_xor_b32 s6, s4, 0x100
    s_xor_b32 s7, s5, 0x100
    s_cmp_lt_u32 s3, 4
    s_cbranch_scc1 L_A
    """)
    def addr_setup(e, g):
        e(f"""
        v_bfe_u32 v{vT+2}, v{vLane}, 4, 1
        v_lshrrev_b32 v{vT+3}, 5, v{vLane}
        v_lshl_or_b32 v{vT+2}, v{vT+3}, 2, v{vT+2}
        v_xor_b32 v{vT+3}, v{vT+1}, v{vT+2}
        v_lshl_add_u32 v{vDV}, v{vT+3}, 4, v{vT}
        v_and_b32 v{vT}, 15, v{vLane}
        v_lshrrev_b32 v{vT+1}, 4, v{vLane}
        v_lshrrev_b32 v{vT+2}, 1, v{vT}
        v_lshlrev_b32 v{vT+3}, 7, v{vT}
        s_lshl_b32 s39, s35, 12
        v_xor_b32 v{vT+4}, v{vT+1}, v{vT+2}
        v_lshl_add_u32 v{vKA}, v{vT+4}, 4, v{vT+3}
        v_xor_b32 v{vKA+1}, 64, v{vKA}
        """)
        for st in range(2):
            e(f"""
            v_add_u32 v{vKA2+st}, 0x10000, v{vKA+st}
            v_add_u32 v{vQA+st}, s39, v{vKA+st}
            v_add_u32 v{vQA2+st}, s39, v{vKA2+st}
            """)
        if g == "A":
            e(f"""
            v_lshrrev_b32 v{vT+2}, 2, v{vT}
            v_lshl_add_u32 v{vT+3}, v{vT+1}, 2, v{vT+2}
            v_lshlrev_b32 v{vT+3}, 7, v{vT+3}
            v_lshrrev_b32 v{vT+2}, 1, v{vT+2}
            v_and_b32 v{vT+4}, 1, v{vT+1}
            v_lshl_or_b32 v{vT+2}, v{vT+4}, 2, v{vT+2}
            v_and_b32 v{vT+4}, 2, v{vLane}
            v_xor_b32 v{vT+2}, v{vT+2}, v{vT+4}
            v_lshl_add_u32 v{vT+3}, v{vT+2}, 4, v{vT+3}
            v_and_b32 v{vT+4}, 1, v{vLane}
            v_lshl_add_u32 v{vVA}, v{vT+4}, 3, v{vT+3}
            v_xor_b32 v{vVA+1}, 16, v{vVA}
            v_xor_b32 v{vVA+2}, 64, v{vVA}
            v_xor_b32 v{vVA+3}, 64, v{vVA+1}
            v_add_u32 v{vVA2}, 0x10000, v{vVA}
            v_add_u32 v{vVA2+1}, 0x10000, v{vVA+1}
            v_add_u32 v{vVA2+2}, 0x10000, v{vVA+2}
            v_add_u32 v{vVA2+3}, 0x10000, v{vVA+3}
            v_lshlrev_b32 v{vOA}, 9, v{vT}
            v_lshl_add_u32 v{vOA}, v{vT+1}, 4, v{vOA}
            s_lshl_b32 s38, s35, 14
            v_add_u32 v{vOA}, s38, v{vOA}
            s_add_u32 s8, s4, 8192
            s_add_u32 s9, s5, 8192
            s_add_u32 s10, s6, 8192
            s_add_u32 s11, s7, 8192
            """)
        if g == "B":
            e(f"""
            v_and_b32 v14, 7, v{vLane}
            v_lshlrev_b32 v14, 9, v14
            v_bfe_u32 v15, v{vLane}, 3, 1
            v_lshl_add_u32 v14, v15, 16, v14
            s_lshl_b32 s38, s34, 14
            s_add_u32 s38, s38, s39
            s_add_u32 s38, s38, 0x20000
            v_add_u32 v14, s38, v14
            """)
        e(f"""
        s_lshl_b32 s38, s35, 11
        s_add_u32 s38, s38, {XOFF}
        v_lshlrev_b32 v{vT+2}, 4, v{vLane}
        v_add_u32 v{vX}, s38, v{vT+2}
        s_mov_b32 s42, {f2u(0.0625 * 1.4426950408889634):#x}
        """)
    def run_mfma(e, g, k0, k1, stamp, fr0, after=None, before=None):
        after = after or {}; before = before or {}
        nread = k0; fr = fr0
        frag = {}; pend_dma = []; lastd = [-9]
        rq = []
        def do_bar(kb):
            if kb in kbs:
                j = kbs.index(kb)
                while pend_dma: pend_dma.pop(0)()
                barrier(e, g, j, stamp)
                if j + 1 < NB and who(j + 1) == g and kbs[j + 1] < k1:
                    for b in issue[j + 1]: pend_dma.extend(split_dma(e, b))
        def queue_reads(k):
            nonlocal nread, fr
            while nread <= RP[k]:
                for (dst, (r, off), kind, _b) in ops[nread]["reads"]:
                    if dst is None:
                        dst = FR[fr % NF]; fr += 1; frag[nread] = dst
                    if kind == "b128": rq.append((f"ds_read_b128 v[{dst}:{dst+3}], v{r} offset:{off}", ("op", nread)))
                    else:
                        rq.append((f"ds_read_b64_tr_b16 v[{dst}:{dst+1}], v{r} offset:{off}", ("op", nread)))
                        rq.append((f"ds_read_b64_tr_b16 v[{dst+2}:{dst+3}], v{r} offset:{off + 2048}", ("op", nread)))
                nread += 1
        def flush(n=None):
            while rq and (n is None or n > 0):
                t, tag = rq.pop(0); e(t, tag=tag)
                if n is not None: n -= 1
        do_bar(k0 - LA1)
        for k in range(k0, k1):
            o = ops[k]
            do_bar(k)
            queue_reads(k); flush()
            for cb in before.get(k, []): cb()
            if o.get("need"): e.wait_lgkm(o["need"])
            e.wait_lgkm(("op", k))
            a = frag[k]; acc = o["acc"]; bb = o["b"]
            ex = list(after.get(k, []))
            for qh in range(2):
                d = acc + 8 * qh; bq = bb + 4 * qh
                cin = "0" if o["first"] else f"v[{d}:{d+3}]"
                e(f"v_mfma_f32_16x16x32_bf16 v[{d}:{d+3}], v[{a}:{a+3}], v[{bq}:{bq+3}], {cin}")
                if qh == 0:
                    if k + 1 < k1 and (k + 1) not in kbs:
                        queue_reads(k + 1); flush((len(rq) + 1) // 2)
                    for cb in ex[:len(ex) // 2]: cb()
            for cb in ex[len(ex) // 2:]: cb()
            if W and 256 <= k < 384: ok = (RP[k + 1] - RP[k] == 1) and not ex and (k - lastd[0] >= dmagap)
            else: ok = k % dmagap == dmagap - 1
            if pend_dma and ok:
                pend_dma.pop(0)(); lastd[0] = k
        return fr
    def max_instrs():
        L = []
        m = [vT, vT + 1]
        idx = [[vS + n * 16 + qh * 8 + i for n in range(8) for i in range(8)] for qh in range(2)]
        for qh in range(2): L.append(f"v_max3_f32 v{m[qh]}, v{idx[qh][0]}, v{idx[qh][1]}, v{idx[qh][2]}")
        for n in range(3, 63, 2):
            for qh in range(2): L.append(f"v_max3_f32 v{m[qh]}, v{m[qh]}, v{idx[qh][n]}, v{idx[qh][n+1]}")
        for qh in range(2): L.append(f"v_max_f32 v{m[qh]}, v{m[qh]}, v{idx[qh][63]}")
        L.append(f"v_permlane16_swap_b32 v{m[0]}, v{m[1]}")
        L.append(f"v_max_f32 v{m[0]}, v{m[0]}, v{m[1]}")
        L.append(f"v_mov_b32 v{m[1]}, v{m[0]}")
        L.append(f"v_permlane32_swap_b32 v{m[0]}, v{m[1]}")
        L.append(f"v_max_f32 v{m[0]}, v{m[0]}, v{m[1]}")
        L.append(f"v_mul_f32 v{vM}, s42, v{m[0]}")
        return L
    def exp_instrs(tile_done=None):
        L = [f"v_mov_b32 v{vMA}, v{vM}", f"v_mov_b32 v{vMB}, v{vM}", f"v_permlane16_swap_b32 v{vMA}, v{vMB}"]
        l = [vT + 2, vT + 3]
        for i in range(0, 130, 2):
            if i < 128:
                mm = vMB if (i >> 3) & 1 else vMA
                L.append(f"v_fma_f32 v{vS+i}, v{vS+i}, s42, -v{mm}")
                L.append(f"v_fma_f32 v{vS+i+1}, v{vS+i+1}, s42, -v{mm}")
                L.append(f"v_exp_f32 v{vS+i}, v{vS+i}")
                L.append(f"v_exp_f32 v{vS+i+1}, v{vS+i+1}")
            if i >= 2:
                j = i - 2; qh = (j >> 3) & 1
                if j < 16 and j % 8 == 0: L.append(f"v_add_f32 v{l[qh]}, v{vS+j}, v{vS+j+1}")
                else:
                    L.append(f"v_add_f32 v{l[qh]}, v{l[qh]}, v{vS+j}"); L.append(f"v_add_f32 v{l[qh]}, v{l[qh]}, v{vS+j+1}")
                L.append(f"v_cvt_pk_bf16_f32 v{vP + j // 2}, v{vS+j}, v{vS+j+1}")
                if tile_done and j % 8 == 6: L += tile_done(j // 16, (j % 16) // 8)
        L.append(f"v_permlane16_swap_b32 v{l[0]}, v{l[1]}")
        L.append(f"v_add_f32 v{l[0]}, v{l[0]}, v{l[1]}")
        L.append(f"v_mov_b32 v{l[1]}, v{l[0]}")
        L.append(f"v_permlane32_swap_b32 v{l[0]}, v{l[1]}")
        L.append(f"v_add_f32 v{vL}, v{l[0]}, v{l[1]}")
        return L
    def cost(l): return 2 if l.startswith("v_exp") else 1
    wr_interval = {}
    def run_valu(e, g, L, p0, p1, stamp, late, defer=False):
        tot = sum(cost(l) for l in L)
        js = [j for j in range(NB) if p0 < kbs[j] <= p1]
        acc = 0; k = 0; pend = []
        def emit(l, j):
            e(l, tag="w")
            if ";PW" in l: wr_interval[int(l.split(";PW")[1])] = j
        for j in js:
            for l in pend: emit(l, j)
            pend = []
            if who(j) == g:
                for b in issue[j]: dma(e, b)
            lim = tot * (kbs[j] - p0 - late) / (p1 - p0 - late)
            while k < len(L) and (acc < lim or kbs[j] == p1):
                if defer and "ds_write_b128" in L[k] and kbs[j] < p1: pend.append(L[k])
                else: emit(L[k], j)
                acc += cost(L[k]); k += 1
            if kbs[j] < p1:
                e.wait_lgkm("w")
                barrier(e, g, j, stamp)
    J = lambda kb: kbs.index(kb)
    xbuf = lambda tile: tile % NX
    M0OFF = (NX - 1) * 8192; REFOFF = M0OFF + 1024; L1OFF = xbuf(8) * 8192
    first = True
    for j in range(0, J(128 - LA1)):
        for n, b in enumerate(issue[j]):
            if who(j) == "B": dma(eB, b)
            if first and n == 2:
                addr_setup(eB, "B"); first = False
        if touch is not None and j == touch:
            eB(f"v_lshlrev_b32 v{vT}, 12, v{vLane}")
            eB(f"v_lshlrev_b32 v{vT+1}, 10, v{vLane}")
            eB(f"v_and_b32 v{vT}, 0x20000, v{vT}")
            eB(f"v_and_b32 v{vT+1}, 0x8000, v{vT+1}")
            eB(f"buffer_load_dword v{vT+2}, v{vT}, s[24:27], 0 offen nt", tag="tch")
            eB(f"buffer_load_dword v{vT+3}, v{vT+1}, s[28:31], 0 offen nt", tag="tch")
        if j >= 1:
            for qb in pub[j - 1]:
                if blocks[qb][0] == "Q":
                    c = blocks[qb][1]
                    for n in range(4):
                        r, o = lds_addr(vQA + n // 2, vQA2 + n // 2, qb, (n & 1) * 2048)
                        qf = vQF + c * 16 + n * 4
                        eB(f"ds_read_b128 v[{qf}:{qf+3}], v{r} offset:{o}", tag="q")
                    eB("s_waitcnt lgkmcnt(0)")
        barrier(eB, "B", j, stampB)
    if who(J(128 - LA1)) == "B":
        for b in issue[J(128 - LA1)]: dma(eB, b)
    if prio: eB("s_setprio 1")
    run_mfma(eB, "B", 128, 256, stampB, 0)
    if prio: eB("s_setprio 0")
    def tile_done(tile, half):
        p = vP + tile * 8 + half * 4
        return [f"ds_write_b128 v{vX}, v[{p}:{p+3}] offset:{xbuf(tile) * 8192 + half * 1024} ;PW{tile * 2 + half}"]
    LB = [f"ds_read_b32 v{vT+4}, v{vX} offset:{M0OFF}", f"s_mov_b32 s44, {f2u(T):#x}"] + max_instrs() + [
        "s_waitcnt lgkmcnt(0)",
        f"v_sub_f32 v{vT+5}, v{vM}, v{vT+4}",
        f"v_cmp_lt_f32 vcc, s44, v{vT+5}",
        f"v_cndmask_b32 v{vM}, v{vT+4}, v{vM}, vcc",
        f"ds_write_b32 v{vX}, v{vM} offset:{REFOFF} ;PW100"] + exp_instrs(tile_done) + [f"ds_write_b32 v{vX}, v{vL} offset:{L1OFF} ;PW16"]
    run_valu(eB, "B", LB, 256 - LA1, endB, stampB, lateB, defer=bool(W))
    eB("s_waitcnt lgkmcnt(0)")
    barrier(eB, "B", J(endB), stampB)
    lastB = max([J(endB)] + [pub_at[b] for b in owner if owner[b] == "B"])
    for j in range(J(endB) + 1, lastB + 1):
        if who(j) == "B":
            for b in issue[j]: dma(eB, b)
        barrier(eB, "B", j, stampB)
    stampB(22)
    eB("s_branch L_fin")

    e = Stream(); stamp = mkstamp(e)
    e.raw("L_A:")
    addr_setup(e, "A")
    if cpf: e("s_waitcnt vmcnt(0)")
    if prio: e("s_setprio 1")
    fr = run_mfma(e, "A", 0, 128, stamp, 0)
    if prio: e("s_setprio 0")
    run_valu(e, "A", max_instrs() + [f"ds_write_b32 v{vX}, v{vM} offset:{M0OFF}"] + exp_instrs(), 128 - LA1, 256 - LA1, stamp, lateA)
    if prio: e("s_setprio 1")
    after = {}; before = {}
    def put(k, it):
        def f(it=it):
            if it[0] == "W": e.wait_lgkm(it[1])
            else: e(it[0], tag=it[1])
        after.setdefault(k, []).append(f)
    def place(L, k0, per):
        for n, it in enumerate(L): put(k0 + n // per, it)
    def pb_read(tile):
        p = PBREG[tile]; o = xbuf(tile) * 8192
        return [(f"ds_read_b128 v[{p}:{p+3}], v{vX} offset:{o}", ("pb", tile)), (f"ds_read_b128 v[{p+4}:{p+7}], v{vX} offset:{o+1024}", ("pb", tile))]
    bar_op = lambda j: kbs[j] + (W if (W and kbs[j] < 384) else 0)
    jref = wr[100] if wr else J(endB)
    place([(f"ds_read_b32 v{vF0}, v{vX} offset:{REFOFF}", "ref")], bar_op(jref), 1)
    place([("W", "ref"), (f"v_sub_f32 v{vF0}, v{vM}, v{vF0}", None), (f"v_exp_f32 v{vF0}, v{vF0}", None), (f"v_cmp_neq_f32 s[44:45], 1.0, v{vF0}", None)], bar_op(jref) + 6, 2)
    regfree = {t: (317 + t if t < 4 else 384) for t in range(8)}
    for t in range(4): regfree[t] = 304 + 4 * t + 4
    for t in range(5, 8): regfree[t] = 368 + 4 * (t - 4) + 4
    regfree[4] = 256
    rd_op = {}; nextk = 0
    for t in range(8):
        jw = wr[2 * t + 1] if wr else J(endB)
        k = max(regfree[t], bar_op(jw), nextk)
        while W and any(kb <= k + 1 and k < kb + W for kb in kbs if 256 < kb < 384): k += 1
        rd_op[t] = k
        place(pb_read(t), k, 1); nextk = k + 2
    def resc_check():
        e("s_cmp_lg_u64 s[44:45], 0")
        e("s_cbranch_scc1 L_rescale")
        e.raw("L_resc_back:")
    before[384] = [resc_check]
    nextk = max(nextk, endB)
    place([(f"ds_read_b32 v{vInv}, v{vX} offset:{L1OFF}", "l1")], nextk, 1)
    place([("W", "l1"), (f"v_fma_f32 v{vInv}, v{vF0}, v{vL}, v{vInv}", None), (f"v_rcp_f32 v{vMA}, v{vInv}", None), (f"v_rcp_f32 v{vMB}, v{vInv}", None),
           ("s_nop 0", None), (f"v_permlane16_swap_b32 v{vMA}, v{vMB}", None)], nextk + 4, 2)
    assert (not wr) or nextk + 7 <= 402
    def fin(u):
        c, dt = u // 2, u & 1
        L = []; st = []
        for qh in range(2):
            ob = vO + c * 32 + dt * 16 + qh * 8
            for i in range(8): L.append((f"v_mul_f32 v{ob+i}, v{vMB if qh else vMA}, v{ob+i}", None))
            for i in range(4): L.append((f"v_cvt_pk_bf16_f32 v{ob+i}, v{ob+2*i}, v{ob+2*i+1}", None))
            for i in range(2): L.append((f"v_permlane16_swap_b32 v{ob+i}, v{ob+2+i}", None))
            st.append((f"buffer_store_dwordx4 v[{ob}:{ob+3}], v{vOA}, s[28:31], s{(8 if qh else 4)+c} offen offset:{dt*64} {sf}", "st"))
        return L, st
    for u in range(7):
        L, st = fin(u)
        k0 = 384 + 16 * (u + 1) + 2
        per = finper if u < 6 else 3
        h = -(-14 // per)
        place(L[:14], k0, per); put(k0 + h, st[0])
        k1_ = k0 + max(h + 1, stgap if u < 6 else 0)
        place(L[14:], k1_, per); put(k1_ + h, st[1])
        assert k1_ + h < 512
    run_mfma(e, "A", 256, 512, stamp, fr, after=after, before=before)
    L, st = fin(7)
    for it in L[:14] + [st[0]] + L[14:] + [st[1]]: e(it[0], tag=it[1])
    stamp(22)
    if wr:
        assert wr == wr_interval
        done_by = lambda k: min(j for j in range(NB) if kbs[j] - 1 >= RP[k + 3] + 1)
        for tile in list(range(8)) + [8]:
            for half in range(2 if tile < 8 else 1):
                w = wr_interval[tile * 2 + half]
                if tile - NX >= 0: assert w - 1 >= done_by(rd_op[tile - NX]), (tile, w, rd_op)
                if tile == NX - 1: assert w - 1 >= done_by(bar_op(jref)), (tile, w)
    e.raw("L_fin:")
    if prof is not None:
        e("s_waitcnt vmcnt(0)")
        stamp(23)
        e("s_memrealtime s[44:45]")
        e("s_waitcnt lgkmcnt(0)")
        e("v_mov_b32 v10, 0")
        e("s_sub_u32 s46, s44, s40")
        e("v_writelane_b32 v10, s46, 40")
        for i in range(pidx[0]):
            e(f"s_sub_u32 s46, s{50 + 2 * i}, s50")
            e(f"v_writelane_b32 v10, s46, {i}")
        e(f"""
        s_lshl_b32 s46, s2, 12
        s_lshl_b32 s47, s3, 9
        s_add_u32 s46, s46, s47
        v_lshlrev_b32 v16, 2, v{vLane}
        v_add_u32 v16, s46, v16
        global_store_dword v16, v10, s[36:37] offset:256
        """)
    e.raw("L_end:")
    e("s_endpgm")
    e.raw("L_rescale:")
    e.raw(f"v_mov_b32 v{vMA}, v{vF0}")
    e.raw(f"v_mov_b32 v{vMB}, v{vF0}")
    e.raw("s_nop 15")
    e.raw(f"v_permlane16_swap_b32 v{vMA}, v{vMB}")
    for i in range(128): e.raw(f"v_mul_f32 v{vO+i}, v{vMB if (i >> 3) & 1 else vMA}, v{vO+i}")
    e.raw("s_nop 1")
    e.raw("s_branch L_resc_back")
    e.raw("L_codeend:")
    _gen.info = dict(kbs=kbs, wr=wr_interval, issue=issue, pub=pub, rd=rd_op)
    return HEADER.format(gx=256, bx=512, lds=163840, kn=KN) + "\n".join(eB.lines() + e.lines()) + "\n" + FOOTER.format(kn=KN, vgpr=256, sgpr=102, acc=256)

if __name__ == "__main__":
    V = {"": {}, "_np": dict(vpf={}), "_pnt": dict(pff="nt"), "_p2": dict(vpf={330: 3}), "_p3": dict(vpf={266: 1, 282: 2, 314: 3})}
    for k, v in V.items():
        open(f"k8{k}.s", "w").write(gen(**v))
        open(f"t8{k}.s", "w").write(gen(prof="pre", rt=True, **v))
        open(f"c8{k}.s", "w").write(gen(prof="pre", **v))
```
